```python
import torch

def _softmax(x, axis=-1):
    return torch.softmax(x, dim=axis)
def _gelu(x):
    return torch.nn.functional.gelu(x, approximate="tanh")
def _silu(x):
    return torch.nn.functional.silu(x)
def _sigmoid(x):
    return torch.sigmoid(x)
def _layernorm(x, axis=-1, eps=1e-5):
    m = x.mean(dim=axis, keepdim=True)
    v = x.var(dim=axis, keepdim=True, unbiased=False)
    return (x - m) / torch.sqrt(v + eps)
def _scatter_add(tgt, idx, src, axis=0):
    return tgt.clone().index_add_(axis, idx, src)
def _segment_sum(src, seg, n):
    out = torch.zeros((n,) + src.shape[1:], dtype=src.dtype)
    return out.index_add_(0, seg, src)
def _pad(x, pw):
    flat = tuple(v for pair in reversed(pw) for v in pair)
    return torch.nn.functional.pad(x, flat)

kernel_name = 'concat_heads__ssm_conv_s5__ssm_conv_s4d__prompt'

def setup_inputs():

    _w = (lambda a: (lambda t: t.to(torch.bfloat16) if t.is_floating_point() else t)(torch.as_tensor(a)))
    def _A_setup():
        B, S, D = 1, 2048, 576
        P = D
        Lambda_re = -0.5 * (lambda _x: torch.exp(torch.as_tensor(_x)))((lambda *s: torch.randn(*s, dtype=torch.bfloat16) * 0.2)(P))
        Lambda_im = (lambda *s: torch.randn(*s, dtype=torch.bfloat16) * 0.4)(P) * 1.0
        B_re = (lambda *s: torch.randn(*s, dtype=torch.bfloat16) * 0.2)(P, D) * (D ** -0.5)
        B_im = (lambda *s: torch.randn(*s, dtype=torch.bfloat16) * 0.2)(P, D) * (D ** -0.5)
        C_re = (lambda *s: torch.randn(*s, dtype=torch.bfloat16) * 0.2)(D, P) * (P ** -0.5)
        C_im = (lambda *s: torch.randn(*s, dtype=torch.bfloat16) * 0.2)(D, P) * (P ** -0.5)
        log_dt = (lambda *s: torch.randn(*s, dtype=torch.bfloat16) * 0.2)(P) * 0.3 - 2.0
        Dskip = (lambda *s: torch.randn(*s, dtype=torch.bfloat16) * 0.05)(D)
        return {
            "x": _w((lambda *s: torch.randn(*s, dtype=torch.bfloat16) * 0.05)(B, S, D)),
            "Lambda_re": _w(Lambda_re),
            "Lambda_im": _w(Lambda_im),
            "B_re": _w(B_re),
            "B_im": _w(B_im),
            "C_re": _w(C_re),
            "C_im": _w(C_im),
            "log_dt": _w(log_dt),
            "Dskip": _w(Dskip),
        }
    _A_in = _A_setup()

    def _B_setup():
        Bsz, L, D, N = 1, 2048, 576, 128
        return {
            "u": _w((lambda *s: torch.randn(*s, dtype=torch.bfloat16) * 0.05)(Bsz, L, D)),
            "log_A_real": _w((lambda *s: torch.randn(*s, dtype=torch.bfloat16) * 3.2)(D, N) * 0.5),
            "A_imag": _w((lambda *s: torch.randn(*s, dtype=torch.bfloat16) * 0.05)(D, N) * 3.14),
            "C_real": _w((lambda *s: torch.randn(*s, dtype=torch.bfloat16) * 0.1)(D, N) / N ** 0.5),
            "C_imag": _w((lambda *s: torch.randn(*s, dtype=torch.bfloat16) * 0.1)(D, N) / N ** 0.5),
            "log_dt": _w((lambda *s: torch.randn(*s, dtype=torch.bfloat16) * 0.05)(D) * 0.5 - 4.0),
            "D_skip": _w((lambda *s: torch.randn(*s, dtype=torch.bfloat16) * 0.05)(D)),
        }
    _B_in = _B_setup()

    return {
        "A_x": _A_in["x"],
        "A_Lambda_re": _A_in["Lambda_re"],
        "A_Lambda_im": _A_in["Lambda_im"],
        "A_B_re": _A_in["B_re"],
        "A_B_im": _A_in["B_im"],
        "A_C_re": _A_in["C_re"],
        "A_C_im": _A_in["C_im"],
        "A_log_dt": _A_in["log_dt"],
        "A_Dskip": _A_in["Dskip"],
        "B_u": _B_in["u"],
        "B_log_A_real": _B_in["log_A_real"],
        "B_A_imag": _B_in["A_imag"],
        "B_C_real": _B_in["C_real"],
        "B_C_imag": _B_in["C_imag"],
        "B_log_dt": _B_in["log_dt"],
        "B_D_skip": _B_in["D_skip"],
    }

def reference(A_x, A_Lambda_re, A_Lambda_im, A_B_re, A_B_im, A_C_re, A_C_im, A_log_dt, A_Dskip, B_u, B_log_A_real, B_A_imag, B_C_real, B_C_imag, B_log_dt, B_D_skip):
    def _A_ref(x, Lambda_re, Lambda_im, B_re, B_im, C_re, C_im, log_dt, Dskip):
        Bsz, L, H = x.shape
        Lam = Lambda_re + 1j * Lambda_im
        Bmat = B_re + 1j * B_im
        Cmat = C_re + 1j * C_im
        dt = torch.exp(log_dt)
        Lam_bar = torch.exp(dt * Lam)
        B_bar = ((Lam_bar - 1.0) / Lam)[:, None] * Bmat
        Bu = torch.einsum("bld,pd->blp", x + 0j, B_bar)
        h = torch.zeros_like(Bu[:, 0, :])
        hs = []
        for t in range(L):
            h = Lam_bar[None, :] * h + Bu[:, t, :]
            hs.append(h)
        hseq = torch.stack(hs, 1)
        y = 2.0 * torch.einsum("blp,dp->bld", hseq, Cmat).real + x * Dskip[None, None, :]
        return y

    def _B_ref(u, log_A_real, A_imag, C_real, C_imag, log_dt, D_skip):
        L = u.shape[1]
        dt = torch.exp(log_dt)
        A = -torch.exp(log_A_real) + 1j * A_imag
        C = (C_real + 1j * C_imag) * dt[:, None]
        pos = (lambda x, dt: x.to(dt))(torch.arange(L), log_dt.dtype)
        P = torch.exp((A * dt[:, None])[:, :, None] * pos[None, None, :])
        K = 2.0 * torch.einsum("dn,dnl->dl", C, P).real
        L2 = 2 * L
        u_t = (lambda x, *d: x.permute(*d))(u, 0, 2, 1)
        Kf = (lambda x, *a, **k: torch.fft.rfft(x.float(), *a, **k))(K, L2)
        Uf = (lambda x, *a, **k: torch.fft.rfft(x.float(), *a, **k))(u_t, L2)
        y = (lambda x, *a, **k: torch.fft.irfft(x, *a, **k).to(torch.bfloat16))(Uf * Kf[None, :, :], L2)[:, :, :L]
        y = (lambda x, *d: x.permute(*d))(y, 0, 2, 1)
        return y + u * D_skip[None, None, :]

    a = _A_ref(A_x, A_Lambda_re, A_Lambda_im, A_B_re, A_B_im, A_C_re, A_C_im, A_log_dt, A_Dskip)
    b = _B_ref(B_u, B_log_A_real, B_A_imag, B_C_real, B_C_imag, B_log_dt, B_D_skip)
    return torch.concatenate([a, b], axis=-1)
```

```python
import re

TRANS = ("v_exp_f32", "v_log_f32", "v_rcp_f32", "v_rsq_f32", "v_sqrt_f32", "v_sin_f32", "v_cos_f32")

def regs_of(tok):
    tok = tok.strip()
    tok = tok.lstrip("-")
    m = re.match(r"^abs\((.*)\)$", tok)
    if m: tok = m.group(1)
    m = re.match(r"^\|(.*)\|$", tok)
    if m: tok = m.group(1)
    m = re.match(r"^([vsa])(\d+)$", tok)
    if m: return [(m.group(1), int(m.group(2)))]
    m = re.match(r"^([vsa])\[(\d+):(\d+)\]$", tok)
    if m: return [(m.group(1), i) for i in range(int(m.group(2)), int(m.group(3)) + 1)]
    if tok == "vcc": return [("s", 106), ("s", 107)]
    if tok == "vcc_lo": return [("s", 106)]
    if tok == "vcc_hi": return [("s", 107)]
    if tok == "m0": return [("s", 124)]
    if tok == "exec": return [("s", 126), ("s", 127)]
    return []

def split_ops(rest):
    ops = []; depth = 0; cur = ""
    for ch in rest:
        if ch in "[(": depth += 1
        if ch in "])": depth -= 1
        if ch == "," and depth == 0:
            ops.append(cur.strip()); cur = ""
        else:
            cur += ch
    if cur.strip(): ops.append(cur.strip())
    if ops:
        parts = ops[-1].split()
        mods = parts[1:]
        ops[-1] = parts[0]
    else:
        mods = []
    return ops, mods

class Ins:
    def __init__(self, text):
        self.text = text
        t = text.split(";")[0].strip()
        self.is_label = t.endswith(":")
        self.is_dir = t.startswith(".") and not self.is_label
        self.mn = ""; self.ops = []; self.mods = []
        if not t or self.is_label or self.is_dir:
            return
        sp = t.split(None, 1)
        self.mn = sp[0]
        if len(sp) > 1:
            self.ops, self.mods = split_ops(sp[1])
        mn = self.mn
        self.mfma = mn.startswith("v_mfma")
        self.valu = mn.startswith("v_") and not self.mfma
        self.trans = any(mn.startswith(x) for x in TRANS)
        self.vmem = mn.startswith(("buffer_", "global_", "flat_"))
        self.ds = mn.startswith("ds_")
        self.salu = mn.startswith("s_")
        self.dpp = "_dpp" in mn or any(m.startswith(("quad_perm", "row_", "wave_")) for m in self.mods)
        self.lds_dma = self.vmem and ("lds" in self.mods or "_lds_" in mn)
        W = []; R = []
        o = self.ops
        if self.mfma:
            W = regs_of(o[0]); self.A = regs_of(o[1]); self.B = regs_of(o[2]); self.C = regs_of(o[3])
            R = self.A + self.B + self.C
            self.passes = 8 if "32x32x16" in mn else 4
            if "32x32x2_f32" in mn: self.passes = 16
        elif self.valu:
            if mn.startswith("v_cmp"):
                W = regs_of(o[0]); R = sum((regs_of(x) for x in o[1:]), [])
            elif mn.startswith("v_permlane") and "swap" in mn:
                W = regs_of(o[0]) + regs_of(o[1]); R = list(W)
            elif mn.startswith(("v_add_co", "v_sub_co", "v_addc_co", "v_subb_co", "v_div_scale", "v_mad_u64")):
                W = regs_of(o[0]) + regs_of(o[1]); R = sum((regs_of(x) for x in o[2:]), [])
            elif mn == "v_nop":
                pass
            else:
                W = regs_of(o[0]); R = sum((regs_of(x) for x in o[1:]), [])
                if mn.startswith(("v_fmac", "v_pk_fmac", "v_writelane")): R += W
                if mn.startswith("v_cndmask") and len(o) == 3: R += regs_of("vcc")
                if mn.startswith("v_div_fmas"): R += regs_of("vcc")
        elif self.vmem:
            if "store" in mn or ("atomic" in mn and "sc0" not in self.mods) or self.lds_dma or mn in ("buffer_inv", "buffer_wbl2"):
                R = sum((regs_of(x) for x in o), [])
            elif "atomic" in mn:
                R = sum((regs_of(x) for x in o), []); W = regs_of(o[0])
            else:
                W = regs_of(o[0]); R = sum((regs_of(x) for x in o[1:]), [])
        elif self.ds:
            if mn.startswith(("ds_read", "ds_bpermute", "ds_permute", "ds_swizzle")):
                W = regs_of(o[0]); R = sum((regs_of(x) for x in o[1:]), [])
            else:
                R = sum((regs_of(x) for x in o), [])
        elif self.salu:
            if mn.startswith(("s_cmp", "s_cbranch", "s_branch", "s_waitcnt", "s_barrier", "s_nop", "s_endpgm", "s_sleep", "s_setprio", "s_bitcmp")):
                R = sum((regs_of(x) for x in o), [])
            else:
                W = regs_of(o[0]) if o else []
                R = sum((regs_of(x) for x in o[1:]), [])
                if "saveexec" in mn: W += regs_of("exec")
        self.W = W; self.R = R
        self.widestore = self.vmem and "store" in mn and ("x4" in mn or "x3" in mn)
        if self.widestore:
            if mn.startswith("buffer"): self.sdata = regs_of(o[0])
            else: self.sdata = regs_of(o[1])

def fix_hazards(lines):
    out = []
    pos = 0
    lastw = {}
    lastC = {}
    laststore = {}
    nops = 0
    for text in lines:
        I = Ins(text)
        if not I.mn:
            out.append(text); continue
        need = 0
        def req(ppos, ws):
            nonlocal need
            need = max(need, ws - (pos - ppos - 1))
        for r in I.R:
            if r not in lastw: continue
            kind, p, ex = lastw[r]
            if r[0] in "va":
                if kind in ("valu", "trans"):
                    if I.mfma: req(p, 2)
                    if I.valu and I.dpp: req(p, 2)
                    if I.mn.startswith("v_permlane"): req(p, 2)
                    if I.mn.startswith(("v_readlane", "v_readfirstlane")): req(p, 1)
                    if kind == "trans" and not I.trans: req(p, 1)
                if kind == "mfma":
                    passes, D = ex
                    full = {4: 8, 8: 12, 16: 20}[passes]
                    if I.mfma:
                        if r in I.A or r in I.B: req(p, full)
                        elif r in I.C:
                            if I.C == D and I.passes == passes: pass
                            else: req(p, full - 2)
                    else:
                        req(p, full)
            else:
                if kind in ("valu", "trans"):
                    if I.vmem: req(p, 5)
                    elif I.mn.startswith(("v_readlane", "v_writelane")): req(p, 4)
                    elif I.valu or I.mfma: req(p, 2 if not I.mn.startswith("v_div_fmas") else 4)
                    elif I.salu: req(p, 1)
        if I.lds_dma and ("s", 124) in lastw and lastw[("s", 124)][0] == "salu":
            req(lastw[("s", 124)][1], 1)
        for r in I.W:
            if r[0] in "va":
                if r in lastw and lastw[r][0] == "mfma" and not I.mfma:
                    passes, D = lastw[r][2]
                    req(lastw[r][1], {4: 8, 8: 12, 16: 20}[passes])
                if r in lastw and lastw[r][0] == "mfma" and I.mfma:
                    passes, D = lastw[r][2]
                    if not (I.C == D and I.W == D and I.passes == passes):
                        req(lastw[r][1], {4: 8, 8: 12, 16: 20}[passes])
                if r in lastC and not I.mfma:
                    req(lastC[r][0], {4: 3, 8: 7, 16: 15}[lastC[r][1]])
                if r in laststore:
                    req(laststore[r], 2)
        while need > 0:
            n = min(need, 16)
            out.append("    s_nop %d" % (n - 1)); pos += n; need -= n; nops += 1
        out.append(text)
        kind = "mfma" if I.mfma else "trans" if I.trans else "valu" if I.valu else "salu" if I.salu else "mem"
        for r in I.W:
            lastw[r] = (kind, pos, (I.passes, I.W) if I.mfma else None)
        if I.mfma:
            for r in I.C: lastC[r] = (pos, I.passes)
        if I.widestore:
            for r in I.sdata: laststore[r] = pos
        if I.mn == "s_nop":
            pos += int(I.ops[0], 0) + 1
        else:
            pos += 1
    return out

class Asm:
    def __init__(self):
        self.lines = []
    def __call__(self, text):
        for l in text.strip("\n").split("\n"):
            l = l.strip()
            if not l: continue
            if l.endswith(":") or l.startswith(";"):
                self.lines.append(l)
            else:
                self.lines.append("    " + l)
    def label(self, n):
        self.lines.append(n + ":")
    def text(self):
        return "\n".join(fix_hazards(self.lines)) + "\n"

def vr(b, n=1):
    return "v%d" % b if n == 1 else "v[%d:%d]" % (b, b + n - 1)
def sr(b, n=1):
    return "s%d" % b if n == 1 else "s[%d:%d]" % (b, b + n - 1)
```

```python
import sys
from emit import Asm, vr, sr

NAME = "concat_heads__ssm_conv_s5__ssm_conv_s4d__prompt"
REF = open("cdna_kernels/%s.s.ref" % NAME).read()
HEADER_COMMENTS = [l for l in REF.split("\n") if l.startswith(";") and "@launch" not in l]

WS_H = 0
WS_E = 0x500000
WS_F = 0x540000
WS_T = 0x600000
LOG2E = "0x3fb8aa3b"
INV2PI = "0.15915494"

class Cfg:
    stamps = False
    LA = 10
    doA = True
    doB = True
    prefetch = True
    spin = 200000

def srd(a, d, b, nbytes, off=0):
    if off:
        a("s_add_u32 s%d, s%d, 0x%x" % (d, b, off))
        a("s_addc_u32 s%d, s%d, 0" % (d + 1, b + 1))
    else:
        a("s_mov_b32 s%d, s%d" % (d, b))
        a("s_mov_b32 s%d, s%d" % (d + 1, b + 1))
    a("s_mov_b32 s%d, 0x%x" % (d + 2, nbytes))
    a("s_mov_b32 s%d, 0x20000" % (d + 3))

P_X, P_LRE, P_LIM, P_BRE, P_BIM, P_CRE, P_CIM, P_LDTA = 4, 6, 8, 10, 12, 14, 16, 18
P_DSK, P_U, P_LAR, P_AIM, P_CR, P_CI, P_LDTB, P_DSKB = 20, 22, 24, 26, 28, 30, 32, 34
P_OUT, P_DBG, P_WS = 36, 38, 40
S_XCD, S_IDX, S_WAVE = 42, 43, 44
S_C, S_S = 45, 46

def stamp(a, cfg, idx):
    if not cfg.stamps: return
    a("s_memrealtime s[98:99]")
    a("s_waitcnt lgkmcnt(0)")
    a("s_mov_b32 s%d, s98" % (80 + idx))

def dump_stamps(a, cfg, n, vt=4):
    if not cfg.stamps: return
    srd(a, 92, P_WS, 0x100000, WS_T)
    a("s_lshl_b32 s96, s2, 9")
    a("s_lshl_b32 s97, s%d, 6" % S_WAVE)
    a("s_add_u32 s96, s96, s97")
    a("v_mov_b32 v%d, s96" % vt)
    for i in range(n):
        a("v_mov_b32 v%d, s%d" % (vt + 1, 80 + i))
        a("buffer_store_dword v%d, v%d, s[92:95], 0 offen offset:%d" % (vt + 1, vt, 4 * i))

def cmul(a, dr, di, ar, ai, br, bi):
    a("v_mul_f32 v%d, v%d, v%d" % (dr, ar, br))
    a("v_mul_f32 v%d, v%d, v%d" % (di, ar, bi))
    a("v_fma_f32 v%d, -v%d, v%d, v%d" % (dr, ai, bi, dr))
    a("v_fmac_f32 v%d, v%d, v%d" % (di, ai, br))

def pkcmul(a, d, x, w, conj=False):
    if not conj:
        a("v_pk_mul_f32 v[%d:%d], v[%d:%d], v[%d:%d] op_sel:[0,0] op_sel_hi:[0,1]" % (d, d+1, x, x+1, w, w+1))
        a("v_pk_fma_f32 v[%d:%d], v[%d:%d], v[%d:%d], v[%d:%d] op_sel:[1,1,0] op_sel_hi:[1,0,1] neg_lo:[1,0,0]" % (d, d+1, x, x+1, w, w+1, d, d+1))
    else:
        a("v_pk_mul_f32 v[%d:%d], v[%d:%d], v[%d:%d] op_sel:[0,0] op_sel_hi:[0,1] neg_hi:[1,0]" % (d, d+1, x, x+1, w, w+1))
        a("v_pk_fma_f32 v[%d:%d], v[%d:%d], v[%d:%d], v[%d:%d] op_sel:[1,1,0] op_sel_hi:[1,0,1]" % (d, d+1, x, x+1, w, w+1, d, d+1))

def bf16r(a, v):
    a("v_cvt_pk_bf16_f32 v%d, v%d, v%d" % (v, v, v))
    a("v_lshlrev_b32 v%d, 16, v%d" % (v, v))

def gen_A_loader(a, cfg):
    LW = 47
    a("s_sub_u32 s%d, s%d, 4" % (LW, S_WAVE))
    srd(a, 48, P_X, 2048 * 1152)
    a("s_and_b32 s64, s%d, 1" % LW)
    a("s_cmp_eq_u32 s64, 0")
    a("s_cselect_b32 s52, s%d, s%d" % (P_BRE, P_BIM))
    a("s_cselect_b32 s53, s%d, s%d" % (P_BRE + 1, P_BIM + 1))
    a("s_mov_b32 s54, 0x%x" % (576 * 1152))
    a("s_mov_b32 s55, 0x20000")
    srd(a, 56, P_CRE, 576 * 1152)
    srd(a, 60, P_CIM, 576 * 1152)
    a("v_and_b32 v3, 7, v2")
    a("v_lshrrev_b32 v4, 4, v2")
    a("v_xor_b32 v5, v3, v4")
    a("v_xor_b32 v6, 4, v5")
    a("v_lshlrev_b32 v5, 4, v5")
    a("v_lshlrev_b32 v6, 4, v6")
    a("v_lshrrev_b32 v7, 5, v2")
    a("v_bfe_u32 v8, v2, 3, 2")
    a("v_lshrrev_b32 v9, 3, v2")
    a("s_movk_i32 s65, 1152")
    a("s_lshl_b32 s66, s%d, 7" % S_C)
    a("s_lshr_b32 s67, s%d, 1" % LW)
    a("s_lshl_b32 s67, s67, 6")
    a("s_add_u32 s66, s66, s67")
    a("s_lshl_b32 s67, s64, 4")
    a("s_add_u32 s66, s66, s67")
    a("v_lshl_add_u32 v10, v7, 5, v8")
    a("v_add_u32 v10, s66, v10")
    a("v_mul_lo_u32 v10, v10, s65")
    for n in range(4):
        a("v_add_u32 v%d, %d, v10" % (16 + n, 4 * n * 1152))
        a("v_add_u32 v%d, v%d, v%d" % (16 + n, 16 + n, 5 + (n & 1)))
    a("s_lshl_b32 s66, s%d, 6" % S_S)
    a("s_lshr_b32 s67, s%d, 1" % LW)
    a("s_lshl_b32 s67, s67, 5")
    a("s_add_u32 s66, s66, s67")
    a("v_add_u32 v10, s66, v9")
    a("v_mul_lo_u32 v10, v10, s65")
    for n in range(4):
        a("v_add_u32 v%d, %d, v10" % (20 + n, 8 * n * 1152))
        a("v_add_u32 v%d, v%d, v%d" % (20 + n, 20 + n, 5 + (n & 1)))
    a("s_lshl_b32 s68, s%d, 2" % S_C)
    a("s_add_u32 s68, s68, s%d" % S_S)
    a("s_mul_i32 s69, s68, 57")
    a("s_lshr_b32 s69, s69, 9")
    a("s_mul_i32 s69, s69, 9")
    a("s_sub_u32 s68, s68, s69")
    a("s_lshl_b32 s68, s68, 7")
    a("s_lshl_b32 s70, s%d, 12" % LW)
    stamp(a, cfg, 0)
    total = 72
    LA = cfg.LA
    nb = 0
    for I in range(total):
        st, n = divmod(I, 8)
        slot = st % 4
        if n == 0 and st > 0:
            a("s_add_u32 s68, s68, 128")
            a("s_cmp_eq_u32 s68, 1152")
            a("s_cselect_b32 s68, 0, s68")
        isB = n & 1
        nn = n >> 1
        a("s_add_u32 m0, s70, %d" % (slot * 32768 + isB * 16384 + nn * 1024))
        a("buffer_load_dwordx4 v%d, s[%d:%d], s68 offen lds" % ((20 if isB else 16) + nn, 52 if isB else 48, 55 if isB else 51))
        while nb < 9 and (I == min(8 * (nb + 1) - 1 + LA, total - 1)):
            out = I - (8 * (nb + 1) - 1)
            a("s_waitcnt vmcnt(%d)" % out)
            a("s_barrier")
            if nb == 0: stamp(a, cfg, 1)
            nb += 1
    assert nb == 9
    assert LA <= 16
    stamp(a, cfg, 2)
    a("s_lshl_b32 s66, s%d, 6" % S_S)
    a("s_lshr_b32 s67, s%d, 1" % LW)
    a("s_lshl_b32 s67, s67, 5")
    a("s_add_u32 s66, s66, s67")
    a("s_lshl_b32 s67, s64, 3")
    a("s_add_u32 s66, s66, s67")
    a("v_lshl_add_u32 v10, v7, 4, v8")
    a("v_add_u32 v10, s66, v10")
    a("v_mul_lo_u32 v10, v10, s65")
    a("v_add_u32 v24, v10, v5")
    a("v_add_u32 v25, %d, v10" % (4 * 1152))
    a("v_add_u32 v25, v25, v6")
    a("s_lshl_b32 s68, s%d, 7" % S_S)
    a("s_lshl_b32 s70, s%d, 11" % LW)
    a("s_barrier")
    for n in range(9):
        if n > 0:
            a("s_add_u32 s68, s68, 128")
            a("s_cmp_eq_u32 s68, 1152")
            a("s_cselect_b32 s68, 0, s68")
        for comp in range(2):
            for m in range(2):
                a("s_add_u32 m0, s70, %d" % ((2 * n + comp) * 8192 + m * 1024))
                a("buffer_load_dwordx4 v%d, s[%d:%d], s68 offen lds" % (24 + m, 56 + 4 * comp, 59 + 4 * comp))
    a("s_waitcnt vmcnt(0)")
    stamp(a, cfg, 3)
    a("s_barrier")
    dump_stamps(a, cfg, 4)
    a("s_endpgm")

def gen_A_compute(a, cfg):
    SI, SJ, SQ = 47, 64, 65
    a("s_lshr_b32 s%d, s%d, 1" % (SI, S_WAVE))
    a("s_and_b32 s%d, s%d, 1" % (SJ, S_WAVE))
    a("s_lshl_b32 s%d, s%d, 1" % (SQ, S_C))
    a("s_add_u32 s%d, s%d, s%d" % (SQ, SQ, SI))
    srd(a, 48, P_LRE, 1152)
    srd(a, 52, P_LIM, 1152)
    srd(a, 56, P_LDTA, 1152)
    srd(a, 60, P_WS, 32 * 4608, WS_E)
    srd(a, 68, P_WS, 4096, WS_F)
    srd(a, 72, P_DBG, 256)
    srd(a, 76, P_WS, 64 * 72 * 1024, WS_H)
    a("v_and_b32 v3, 31, v2")
    a("v_lshrrev_b32 v4, 5, v2")
    a("s_lshl_b32 s66, s%d, 6" % S_S)
    a("s_lshl_b32 s67, s%d, 5" % SJ)
    a("s_add_u32 s66, s66, s67")
    a("v_add_u32 v5, s66, v3")
    a("v_lshlrev_b32 v6, 1, v5")
    a("buffer_load_ushort v24, v6, s[48:51], 0 offen")
    a("buffer_load_ushort v25, v6, s[52:55], 0 offen")
    a("buffer_load_ushort v26, v6, s[56:59], 0 offen")
    a("s_mul_i32 s66, s%d, 4608" % SQ)
    a("v_lshlrev_b32 v7, 3, v5")
    a("v_add_u32 v36, s66, v7")
    a("v_mov_b32 v38, -1")
    a("v_mov_b32 v39, -1")
    a("s_lshl_b32 s66, s%d, 7" % SQ)
    a("s_lshl_b32 s67, s%d, 3" % S_S)
    a("s_add_u32 s66, s66, s67")
    a("s_lshl_b32 s67, s%d, 2" % SJ)
    a("s_add_u32 s66, s66, s67")
    a("v_mov_b32 v37, s66")
    a("v_mov_b32 v40, 0")
    a("s_mov_b32 exec_hi, 0")
    a("buffer_store_dwordx2 v[38:39], v36, s[60:63], 0 offen sc1")
    a("s_mov_b64 exec, 1")
    a("buffer_store_dword v40, v37, s[68:71], 0 offen sc1")
    a("s_mov_b64 exec, -1")
    a("v_bfe_u32 v6, v2, 1, 3")
    a("v_xor_b32 v6, v6, v4")
    a("v_lshlrev_b32 v7, 7, v3")
    a("s_lshl_b32 s66, s%d, 13" % SI)
    a("s_lshl_b32 s67, s%d, 13" % SJ)
    a("s_add_u32 s67, s67, 16384")
    for k in range(4):
        a("v_xor_b32 v%d, %d, v6" % (16 + k, 2 * k))
        a("v_lshl_add_u32 v%d, v%d, 4, v7" % (16 + k, 16 + k))
        a("v_add_u32 v%d, s66, v%d" % (8 + k, 16 + k))
        a("v_add_u32 v%d, s67, v%d" % (12 + k, 16 + k))
    for i in range(64):
        a("v_mov_b32 v%d, 0" % (64 + i))
    a("s_waitcnt vmcnt(2)")
    LRE, LIM, DT = 24, 25, 26
    for r in (LRE, LIM, DT):
        a("v_lshlrev_b32 v%d, 16, v%d" % (r, r))
    a("v_mul_f32 v%d, %s, v%d" % (DT, LOG2E, DT))
    a("v_exp_f32 v%d, v%d" % (DT, DT))
    bf16r(a, DT)
    a("v_mul_f32 v27, v%d, v%d" % (DT, LRE))
    a("v_mul_f32 v28, v%d, v%d" % (DT, LIM))
    a("v_mul_f32 v27, %s, v27" % LOG2E)
    a("v_exp_f32 v27, v27")
    a("v_mul_f32 v28, %s, v28" % INV2PI)
    a("v_rndne_f32 v29, v28")
    a("v_sub_f32 v28, v28, v29")
    a("v_cos_f32 v29, v28")
    a("v_sin_f32 v30, v28")
    LR, LI, NLI = 42, 43, 44
    a("v_mul_f32 v%d, v27, v29" % LR)
    a("v_mul_f32 v%d, v27, v30" % LI)
    a("v_sub_f32 v%d, 0, v%d" % (NLI, LI))
    a("v_add_f32 v27, -1.0, v%d" % LR)
    a("v_mul_f32 v28, v%d, v%d" % (LRE, LRE))
    a("v_fmac_f32 v28, v%d, v%d" % (LIM, LIM))
    a("v_rcp_f32 v28, v28")
    a("v_mul_f32 v29, v27, v%d" % LRE)
    a("v_fmac_f32 v29, v%d, v%d" % (LI, LIM))
    a("v_mul_f32 v30, v%d, v%d" % (LI, LRE))
    a("v_fma_f32 v30, -v27, v%d, v30" % LIM)
    a("v_add_f32 v28, v28, v28")
    CFR, CFI, NCFR, NCFI = 46, 47, 48, 49
    a("v_mul_f32 v%d, v29, v28" % CFR)
    a("v_mul_f32 v%d, v30, v28" % CFI)
    a("v_sub_f32 v%d, 0, v%d" % (NCFR, CFR))
    a("v_sub_f32 v%d, 0, v%d" % (NCFI, CFI))
    cur = (LR, LI)
    tmp = [(28, 29), (30, 31)]
    for it in range(7):
        dst = tmp[it & 1]
        if it == 4: dst = (50, 51)
        if it == 5: dst = (52, 53)
        if it == 6: dst = (54, 55)
        cmul(a, dst[0], dst[1], cur[0], cur[1], cur[0], cur[1])
        cur = dst
    PR, PI = 192, 224
    cmul(a, PR, PI, CFR, CFI, LR, LI)
    for t in range(1, 32):
        cmul(a, PR + t, PI + t, PR + t - 1, PI + t - 1, LR, LI)
    a("s_waitcnt vmcnt(0)")
    stamp(a, cfg, 0)
    a("s_barrier")
    stamp(a, cfg, 1)
    a("s_cmp_lg_u32 s%d, 0" % S_WAVE)
    a("s_cbranch_scc1 L_A_noadd")
    a("s_and_b32 s66, s2, 3")
    a("s_lshl_b32 s66, s66, 6")
    a("v_mov_b32 v28, s66")
    a("v_mov_b32 v29, 1")
    a("s_mov_b64 exec, 1")
    a("buffer_atomic_add v29, v28, s[72:75], 0 offen sc1")
    a("s_mov_b64 exec, -1")
    a.label("L_A_noadd")
    def rd(k, off):
        b = 128 + 16 * k
        a("ds_read_b128 v[%d:%d], v%d offset:%d" % (b, b + 3, 8 + k, off))
        a("ds_read_b128 v[%d:%d], v%d offset:%d" % (b + 8, b + 11, 12 + k, off))
        a("ds_read_b128 v[%d:%d], v%d offset:%d" % (b + 4, b + 7, 8 + k, off + 4096))
        a("ds_read_b128 v[%d:%d], v%d offset:%d" % (b + 12, b + 15, 12 + k, off + 4096))
    def mm(k):
        b = 128 + 16 * k
        for aa in range(2):
            for cc in range(2):
                d = 64 + 32 * cc + 16 * aa
                a("v_mfma_f32_32x32x16_bf16 v[%d:%d], v[%d:%d], v[%d:%d], v[%d:%d]" %
                  (d, d + 15, b + 4 * aa, b + 4 * aa + 3, b + 8 + 4 * cc, b + 8 + 4 * cc + 3, d, d + 15))
    def adv(ks, st):
        if st % 2 == 0 and st > 0:
            for k in ks:
                if st % 4 == 2:
                    a("v_add_u32 v%d, 0x10000, v%d" % (8 + k, 8 + k)); a("v_add_u32 v%d, 0x10000, v%d" % (12 + k, 12 + k))
                else:
                    a("v_subrev_u32 v%d, 0x10000, v%d" % (8 + k, 8 + k)); a("v_subrev_u32 v%d, 0x10000, v%d" % (12 + k, 12 + k))
    rd(0, 0); rd(1, 0)
    for st in range(9):
        off = (st % 2) * 32768
        adv((2, 3), st)
        a("s_waitcnt lgkmcnt(4)")
        mm(0)
        rd(2, off)
        a("s_waitcnt lgkmcnt(4)")
        mm(1)
        rd(3, off)
        a("s_waitcnt lgkmcnt(4)")
        mm(2)
        if st < 8:
            adv((0, 1), st + 1)
        a("s_waitcnt lgkmcnt(0)")
        a("s_barrier")
        if st < 8:
            noff = ((st + 1) % 2) * 32768
            rd(0, noff); rd(1, noff)
        if st == 7:
            a("v_and_b32 v28, 3, v2")
            a("v_lshlrev_b32 v28, 6, v28")
            a("buffer_load_dword v29, v28, s[72:75], 0 offen sc1")
        mm(3)
    stamp(a, cfg, 2)
    RE, IM = 64, 96
    for t in range(1, 32):
        a("v_fmac_f32 v%d, v%d, v%d" % (RE + t, LR, RE + t - 1))
        a("v_fmac_f32 v%d, v%d, v%d" % (IM + t, LR, IM + t - 1))
        a("v_fmac_f32 v%d, v%d, v%d" % (RE + t, NLI, IM + t - 1))
        a("v_fmac_f32 v%d, v%d, v%d" % (IM + t, LI, RE + t - 1))
    a("v_mov_b32 v56, v%d" % (RE + 31)); a("v_mov_b32 v58, v%d" % (RE + 31))
    a("v_mov_b32 v57, v%d" % (IM + 31)); a("v_mov_b32 v59, v%d" % (IM + 31))
    a("v_permlane32_swap_b32 v56, v58")
    a("v_permlane32_swap_b32 v57, v59")
    a("v_fmac_f32 v58, v50, v56")
    a("v_fmac_f32 v59, v50, v57")
    a("v_fma_f32 v58, -v51, v57, v58")
    a("v_fmac_f32 v59, v51, v56")
    a("v_min_u32 v58, -2, v58")
    a("v_min_u32 v59, -2, v59")
    a("s_mov_b32 exec_hi, 0")
    a("buffer_store_dwordx2 v[58:59], v36, s[60:63], 0 offen sc1")
    a("s_mov_b64 exec, -1")
    stamp(a, cfg, 3)
    for t in range(32):
        a("v_mul_f32 v%d, v%d, v%d" % (RE + t - 1, CFR, RE + t))
        a("v_fmac_f32 v%d, v%d, v%d" % (RE + t - 1, NCFI, IM + t))
        a("v_mul_f32 v%d, v%d, v%d" % (IM + t, NCFR, IM + t))
        a("v_fmac_f32 v%d, v%d, v%d" % (IM + t, NCFI, RE + t))
    ORE = RE - 1
    a("s_mov_b32 s66, %d" % cfg.spin)
    a("s_waitcnt vmcnt(1)")
    a.label("L_A_clr")
    a("v_cmp_ne_u32 vcc, 36, v29")
    a("s_cmp_eq_u64 vcc, 0")
    a("s_cbranch_scc1 L_A_clr_ok")
    a("s_sleep 2")
    a("buffer_load_dword v29, v28, s[72:75], 0 offen sc1")
    a("s_sub_u32 s66, s66, 1")
    a("s_cmp_eq_u32 s66, 0")
    a("s_waitcnt vmcnt(0)")
    a("s_cbranch_scc0 L_A_clr")
    a.label("L_A_clr_ok")
    a("v_mul_u32_u24 v30, 4608, v4")
    a("v_sub_u32 v30, v36, v30")
    a("v_subrev_u32 v30, 4608, v30")
    a("s_mov_b32 s66, %d" % cfg.spin)
    a.label("L_A_pollE")
    a("v_mov_b32 v31, v30")
    for k in range(16):
        a("buffer_load_dwordx2 v[%d:%d], v31, s[60:63], 0 offen sc1" % (128 + 2 * k, 129 + 2 * k))
        if k < 15:
            a("v_subrev_u32 v31, 9216, v31")
    a("s_waitcnt vmcnt(0)")
    a("v_max_u32 v31, v128, v129")
    for k in range(1, 16):
        a("v_max3_u32 v31, v31, v%d, v%d" % (128 + 2 * k, 129 + 2 * k))
    a("v_cmp_eq_u32 vcc, -1, v31")
    a("s_cmp_eq_u64 vcc, 0")
    a("s_cbranch_scc1 L_A_E_ok")
    a("s_sub_u32 s66, s66, 1")
    a("s_cmp_eq_u32 s66, 0")
    a("s_cbranch_scc0 L_A_pollE")
    a.label("L_A_E_ok")
    stamp(a, cfg, 4)
    a("v_sub_f32 v31, 0, v55")
    for k in range(14, -1, -1):
        r, i_, pr, pi = 128 + 2 * k, 129 + 2 * k, 130 + 2 * k, 131 + 2 * k
        a("v_fmac_f32 v%d, v54, v%d" % (r, pr))
        a("v_fmac_f32 v%d, v54, v%d" % (i_, pi))
        a("v_fmac_f32 v%d, v31, v%d" % (r, pi))
        a("v_fmac_f32 v%d, v55, v%d" % (i_, pr))
    a("v_mov_b32 v130, v128"); a("v_mov_b32 v131, v129")
    a("v_permlane32_swap_b32 v128, v130")
    a("v_permlane32_swap_b32 v129, v131")
    a("v_fmac_f32 v128, v52, v130")
    a("v_fmac_f32 v129, v52, v131")
    a("v_fma_f32 v128, -v53, v131, v128")
    a("v_fmac_f32 v129, v53, v130")
    a("v_fmac_f32 v56, v50, v128")
    a("v_fmac_f32 v57, v50, v129")
    a("v_fma_f32 v56, -v51, v129, v56")
    a("v_fmac_f32 v57, v51, v128")
    a("v_cmp_eq_u32 vcc, 1, v4")
    a("v_cndmask_b32 v128, v128, v56, vcc")
    a("v_cndmask_b32 v129, v129, v57, vcc")
    a("v_sub_f32 v130, 0, v128")
    a("v_sub_f32 v131, 0, v129")
    TB = 147456
    a("s_lshl_b32 s66, s%d, 12" % S_WAVE)
    a("s_add_u32 s66, s66, %d" % TB)
    a("v_and_b32 v28, 7, v3")
    a("v_lshlrev_b32 v29, 2, v4")
    a("v_xor_b32 v28, v28, v29")
    a("v_lshlrev_b32 v29, 7, v3")
    a("v_add_u32 v29, s66, v29")
    for i in range(4):
        a("v_xor_b32 v%d, %d, v28" % (132 + i, i))
        a("v_lshl_add_u32 v%d, v%d, 4, v29" % (132 + i, 132 + i))
    a("v_bfe_u32 v28, v2, 2, 2")
    a("v_bfe_u32 v29, v2, 4, 1")
    a("v_bfe_u32 v30, v2, 1, 1")
    a("v_lshl_add_u32 v29, v29, 1, v30")
    a("v_xor_b32 v29, v29, v28")
    a("v_lshlrev_b32 v29, 4, v29")
    a("v_and_b32 v30, 1, v2")
    a("v_lshl_add_u32 v29, v30, 3, v29")
    a("v_lshl_add_u32 v28, v4, 3, v28")
    a("v_lshl_add_u32 v29, v28, 7, v29")
    a("v_add_u32 v136, s66, v29")
    a("s_lshl_b32 s66, s%d, 1" % SQ)
    a("s_mul_i32 s66, s66, 72")
    a("s_lshl_b32 s67, s%d, 3" % S_S)
    a("s_add_u32 s66, s66, s67")
    a("s_lshl_b32 s67, s%d, 1" % SJ)
    a("s_add_u32 s66, s66, s67")
    a("s_lshl_b32 s66, s66, 10")
    a("v_lshlrev_b32 v137, 4, v2")
    a("v_add_u32 v137, s66, v137")
    for comp in range(2):
        base = ORE if comp == 0 else IM
        for t in range(32):
            if comp == 0:
                a("v_fmac_f32 v%d, v%d, v128" % (base + t, PR + t))
                a("v_fmac_f32 v%d, v%d, v131" % (base + t, PI + t))
            else:
                a("v_fmac_f32 v%d, v%d, v131" % (base + t, PR + t))
                a("v_fmac_f32 v%d, v%d, v130" % (base + t, PI + t))
        pk = 144 + 16 * comp
        for i in range(16):
            a("v_cvt_pk_bf16_f32 v%d, v%d, v%d" % (pk + i, base + 2 * i, base + 2 * i + 1))
        for i in range(4):
            a("ds_write_b128 v%d, v[%d:%d]" % (132 + i, pk + 4 * i, pk + 4 * i + 3))
        fr = 176
        if comp == 1:
            fr = 144
        for th in range(2):
            for kp in range(2):
                for rho in range(2):
                    d = fr + 8 * th + 4 * kp + 2 * rho
                    a("ds_read_b64_tr_b16 v[%d:%d], v136 offset:%d" % (d, d + 1, (16 * kp + 4 * rho) * 128 + 64 * (th ^ rho)))
        a("s_waitcnt lgkmcnt(0)")
        for th in range(2):
            a("s_mov_b32 s66, %d" % (th * 72 * 1024 + comp * 4096))
            for kp in range(2):
                d = fr + 8 * th + 4 * kp
                a("buffer_store_dwordx4 v[%d:%d], v137, s[76:79], s66 offen offset:%d sc1" % (d, d + 3, kp * 1024))
    stamp(a, cfg, 5)
    srd(a, 48, P_X, 2048 * 1152)
    srd(a, 52, P_DSK, 1152)
    srd(a, 56, P_OUT, 2048 * 4608)
    a("s_lshl_b32 s66, s%d, 7" % S_C)
    a("s_lshl_b32 s67, s%d, 5" % S_WAVE)
    a("s_add_u32 s66, s66, s67")
    a("v_add_u32 v5, s66, v3")
    a("s_lshl_b32 s66, s%d, 7" % S_S)
    a("v_lshlrev_b32 v6, 5, v4")
    a("v_add_u32 v6, s66, v6")
    a("v_mul_u32_u24 v7, 1152, v5")
    a("v_add_u32 v7, v7, v6")
    a("s_waitcnt vmcnt(0)")
    a("v_mov_b32 v40, 1")
    a("s_mov_b64 exec, 1")
    a("buffer_store_dword v40, v37, s[68:71], 0 offen sc1")
    a("s_mov_b64 exec, -1")
    stamp(a, cfg, 6)
    for b in range(2):
        for q in range(2):
            a("buffer_load_dwordx4 v[%d:%d], v7, s[48:51], 0 offen offset:%d" % (192 + 8 * b + 4 * q, 195 + 8 * b + 4 * q, 64 * b + 16 * q))
            a("buffer_load_dwordx4 v[%d:%d], v6, s[52:55], 0 offen offset:%d" % (208 + 8 * b + 4 * q, 211 + 8 * b + 4 * q, 64 * b + 16 * q))
    a("v_mul_u32_u24 v7, 4608, v5")
    a("v_lshl_add_u32 v7, v6, 1, v7")
    for k in range(4):
        a("v_add_u32 v%d, 0x10000, v%d" % (20 + k, 16 + k))
        a("v_add_u32 v%d, 0x20000, v%d" % (24 + k, 16 + k))
    a("s_lshl_b32 s66, s%d, 2" % S_C)
    a("s_add_u32 s66, s66, s%d" % S_WAVE)
    a("s_mul_i32 s66, s66, %d" % (72 * 1024))
    a("v_lshlrev_b32 v8, 4, v2")
    a("v_add_u32 v8, s66, v8")
    a("v_min_u32 v9, 17, v2")
    a("v_lshlrev_b32 v9, 2, v9")
    a("s_lshl_b32 s66, s%d, 7" % SQ)
    a("v_add_u32 v9, s66, v9")
    a("s_waitcnt vmcnt(0)")
    a("v_mov_b32 v10, 0xffff0000")
    for i in range(16):
        xr, dr = 192 + i, 208 + i
        lo, hi = 64 + 2 * i, 65 + 2 * i
        a("v_lshlrev_b32 v%d, 16, v%d" % (lo, xr))
        a("v_and_b32 v%d, v10, v%d" % (hi, xr))
        a("v_lshlrev_b32 v11, 16, v%d" % dr)
        a("v_and_b32 v12, v10, v%d" % dr)
        a("v_mul_f32 v%d, v%d, v11" % (lo, lo))
        a("v_mul_f32 v%d, v%d, v12" % (hi, hi))
        a("v_cvt_pk_bf16_f32 v%d, v%d, v%d" % (hi, lo, hi))
        a("v_lshlrev_b32 v%d, 16, v%d" % (lo, hi))
        a("v_and_b32 v%d, v10, v%d" % (hi, hi))
    a("s_barrier")
    a("s_mov_b32 s66, %d" % cfg.spin)
    a.label("L_A_pollF")
    a("buffer_load_dword v11, v9, s[68:71], 0 offen sc1")
    a("s_waitcnt vmcnt(0)")
    a("v_cmp_ne_u32 vcc, 1, v11")
    a("s_cmp_eq_u64 vcc, 0")
    a("s_cbranch_scc1 L_A_F_ok")
    a("s_sub_u32 s66, s66, 1")
    a("s_cmp_eq_u32 s66, 0")
    a("s_cbranch_scc0 L_A_pollF")
    a.label("L_A_F_ok")
    stamp(a, cfg, 7)
    NH = 24
    a("s_lshl_b32 s66, s%d, 13" % S_S)
    def hload(kk):
        n, f = divmod(kk, 8)
        if f == 0 and n > 0:
            a("s_add_u32 s66, s66, 8192")
            a("s_cmp_eq_u32 s66, %d" % (9 * 8192))
            a("s_cselect_b32 s66, 0, s66")
        if f == 0 or f == 4:
            a("s_add_u32 s67, s66, %d" % (4096 * (f // 4)))
        d = 128 + 4 * (kk % NH)
        a("buffer_load_dwordx4 v[%d:%d], v8, s[76:79], s67 offen offset:%d sc1" % (d, d + 3, (f % 4) * 1024))
    def cread(kk):
        sg, k = divmod(kk, 4)
        ar = 16 + 4 * (sg // 8) + k
        d = 96 + 8 * (kk % 4)
        for b in range(2):
            a("ds_read_b128 v[%d:%d], v%d offset:%d" % (d + 4 * b, d + 4 * b + 3, ar, (sg % 8) * 8192 + 4096 * b))
    for kk in range(NH): hload(kk)
    cread(0); cread(1); cread(2)
    for kk in range(72):
        nv = min(NH - 1, 71 - kk)
        nl = 2 * min(2, 71 - kk)
        a("s_waitcnt vmcnt(%d) lgkmcnt(%d)" % (nv, nl))
        h = 128 + 4 * (kk % NH)
        c = 96 + 8 * (kk % 4)
        for b in range(2):
            d = 64 + 16 * b
            a("v_mfma_f32_32x32x16_bf16 v[%d:%d], v[%d:%d], v[%d:%d], v[%d:%d]" % (d, d + 15, c + 4 * b, c + 4 * b + 3, h, h + 3, d, d + 15))
        if kk + 3 < 72: cread(kk + 3)
        if kk + NH < 72: hload(kk + NH)
    stamp(a, cfg, 8)
    for b in range(2):
        for q in range(4):
            d = 64 + 16 * b + 4 * q
            a("buffer_store_dwordx4 v[%d:%d], v7, s[56:59], 0 offen offset:%d" % (d, d + 3, 128 * b + 16 * q))
    if cfg.stamps:
        a("s_waitcnt vmcnt(0)")
    stamp(a, cfg, 9)
    dump_stamps(a, cfg, 10)
    a("s_endpgm")

RG = 20480
K0B, K1B, U0B, U2B = 16, 4240, 8448, 13024
def gen_B(a, cfg):
    GB, SD, SRG = 45, 46, 47
    a("s_mul_i32 s%d, s%d, 9" % (GB, S_XCD))
    a("s_add_u32 s%d, s%d, s%d" % (GB, GB, S_IDX))
    a("s_sub_u32 s%d, s%d, 18" % (GB, GB))
    a("s_lshl_b32 s%d, s%d, 3" % (SD, GB))
    a("s_add_u32 s%d, s%d, s%d" % (SD, SD, S_WAVE))
    a("s_mul_i32 s%d, s%d, %d" % (SRG, S_WAVE, RG))
    srd(a, 48, P_LAR, 576 * 256)
    srd(a, 52, P_AIM, 576 * 256)
    srd(a, 56, P_CR, 576 * 256)
    srd(a, 60, P_CI, 576 * 256)
    srd(a, 64, P_LDTB, 1152)
    srd(a, 68, P_U, 2048 * 1152)
    srd(a, 72, P_OUT, 2048 * 4608)
    a("s_lshl_b32 s76, s%d, 4" % GB)
    a("s_add_u32 s78, s%d, s76" % P_DSKB)
    a("s_addc_u32 s79, s%d, 0" % (P_DSKB + 1))
    a("s_load_dwordx4 s[88:91], s[78:79], 0")
    a("s_lshl_b32 s77, s%d, 8" % SD)
    a("v_lshlrev_b32 v3, 2, v2")
    a("v_add_u32 v3, s77, v3")
    a("s_lshl_b32 s77, s%d, 1" % SD)
    a("v_mov_b32 v4, s77")
    a("buffer_load_dword v8, v3, s[48:51], 0 offen")
    a("buffer_load_dword v9, v3, s[52:55], 0 offen")
    a("buffer_load_ushort v12, v4, s[64:67], 0 offen")
    a("buffer_load_dword v10, v3, s[56:59], 0 offen")
    a("buffer_load_dword v11, v3, s[60:63], 0 offen")
    a("v_mul_u32_u24 v5, 4608, v0")
    a("v_add_u32 v5, s76, v5")
    for i in range(4):
        a("buffer_load_dwordx4 v[%d:%d], v5, s[68:71], 0 offen offset:%d" % (224 + 4 * i, 227 + 4 * i, 1152 * i))
    stamp(a, cfg, 0)
    a("v_mov_b32 v7, 0xffff0000")
    a("v_and_b32 v3, 31, v2")
    a("v_lshrrev_b32 v4, 5, v2")
    a("v_lshlrev_b32 v5, 3, v2")
    a("v_add_u32 v5, s%d, v5" % SRG)
    a("v_mul_u32_u24 v6, 528, v3")
    a("v_lshl_add_u32 v6, v4, 4, v6")
    a("v_add_u32 v6, s%d, v6" % SRG)
    a("s_waitcnt vmcnt(6)")
    a("v_lshlrev_b32 v12, 16, v12")
    a("v_mul_f32 v12, %s, v12" % LOG2E)
    a("v_exp_f32 v12, v12")
    bf16r(a, 12)
    a("v_lshlrev_b32 v14, 16, v8")
    a("v_and_b32 v15, v7, v8")
    a("v_lshlrev_b32 v16, 16, v9")
    a("v_and_b32 v17, v7, v9")
    for m in range(2):
        a("v_mul_f32 v%d, %s, v%d" % (14 + m, LOG2E, 14 + m))
    for m in range(2):
        a("v_exp_f32 v%d, v%d" % (14 + m, 14 + m))
    a("v_cvt_pk_bf16_f32 v15, v14, v15")
    a("v_lshlrev_b32 v14, 16, v15")
    a("v_and_b32 v15, v7, v15")
    for m in range(2):
        a("v_mul_f32 v%d, v%d, v12" % (14 + m, 14 + m))
        a("v_mul_f32 v%d, v%d, v12" % (16 + m, 16 + m))
        a("v_mul_f32 v%d, 0xbfb8aa3b, v%d" % (14 + m, 14 + m))
        a("v_mul_f32 v%d, %s, v%d" % (16 + m, INV2PI, 16 + m))
    def anchor(dst, k):
        for m in range(2):
            t0, t1, t2 = 32 + 4 * m, 33 + 4 * m, 34 + 4 * m
            if k == 1:
                a("v_exp_f32 v%d, v%d" % (t0, 14 + m))
                a("v_rndne_f32 v%d, v%d" % (t2, 16 + m))
                a("v_sub_f32 v%d, v%d, v%d" % (t1, 16 + m, t2))
            else:
                kk = {8: "0x41000000", 256: "0x43800000"}[k]
                a("v_mul_f32 v%d, %s, v%d" % (t0, kk, 14 + m))
                a("v_mul_f32 v%d, %s, v%d" % (t1, kk, 16 + m))
                a("v_exp_f32 v%d, v%d" % (t0, t0))
                a("v_rndne_f32 v%d, v%d" % (t2, t1))
                a("v_sub_f32 v%d, v%d, v%d" % (t1, t1, t2))
            a("v_cos_f32 v%d, v%d" % (t2, t1))
            a("v_sin_f32 v%d, v%d" % (t1, t1))
            a("v_mul_f32 v%d, v%d, v%d" % (dst + 2 * m, t0, t2))
            a("v_mul_f32 v%d, v%d, v%d" % (dst + 2 * m + 1, t0, t1))
    W1, W8, W256 = 20, 24, 28
    anchor(W8, 8)
    nw = [0]
    def wrow(row, src):
        t = 60 + 2 * (nw[0] & 1); nw[0] += 1
        a("v_cvt_pk_bf16_f32 v%d, v%d, v%d" % (t, src, src + 1))
        a("v_cvt_pk_bf16_f32 v%d, v%d, v%d" % (t + 1, src + 2, src + 3))
        a("ds_write_b64 v5, v[%d:%d] offset:%d" % (t, t + 1, row * 528))
    def mul2(d, x, w, conj=False):
        for m in range(2):
            pkcmul(a, d + 2 * m, x + 2 * m, w + 2 * m, conj)
    b0, b1, W32 = 128, 144, 40
    a("v_mov_b32 v%d, 1.0" % b0); a("v_mov_b32 v%d, 0" % (b0 + 1)); a("v_mov_b32 v%d, 1.0" % (b0 + 2)); a("v_mov_b32 v%d, 0" % (b0 + 3))
    for i in range(4):
        a("v_mov_b32 v%d, v%d" % (b0 + 4 + i, W8 + i))
    mul2(b0 + 8, W8, W8)
    mul2(b0 + 12, b0 + 8, W8)
    mul2(W32, b0 + 8, b0 + 8)
    for r in range(4): wrow(r, b0 + 4 * r)
    src, dst = b0, b1
    for blk in range(1, 8):
        for r in range(4):
            mul2(dst + 4 * r, src + 4 * r, W32)
        for r in range(4):
            wrow(4 * blk + r, dst + 4 * r)
        src, dst = dst, src
    anchor(W1, 1)
    anchor(W256, 256)
    a("s_waitcnt lgkmcnt(0)")
    for k in range(16):
        a("ds_read_b128 v[%d:%d], v6 offset:%d" % (64 + 4 * k, 67 + 4 * k, 32 * k))
    def drow(h, v): return 8 * (v >> 2) + 4 * h + (v & 3)
    rowof = {}
    for e in range(9): rowof[e] = drow(0, e)
    for i, e in enumerate((256, 258, 260, 262, 264)): rowof[e] = drow(0, 9 + i)
    rowof[1024] = drow(0, 14); rowof[1032] = drow(0, 15)
    for i, e in enumerate((512, 516, 520, 768, 772, 776)): rowof[e] = drow(1, i)
    rowof[1536] = drow(1, 6); rowof[1544] = drow(1, 7)
    rowof[1792] = drow(1, 8); rowof[1800] = drow(1, 9)
    rowof[1280] = drow(1, 14); rowof[1288] = drow(1, 15)
    a("s_waitcnt vmcnt(4)")
    G = {e: 128 + 4 * e for e in range(9)}
    a("v_add_f32 v13, v12, v12")
    a("v_lshlrev_b32 v%d, 16, v10" % G[0])
    a("v_lshlrev_b32 v%d, 16, v11" % (G[0] + 1))
    a("v_and_b32 v%d, v7, v10" % (G[0] + 2))
    a("v_and_b32 v%d, v7, v11" % (G[0] + 3))
    a("v_mul_f32 v%d, v13, v%d" % (G[0], G[0]))
    a("v_mul_f32 v%d, v13, v%d" % (G[0] + 2, G[0] + 2))
    a("v_mul_f32 v%d, -v13, v%d" % (G[0] + 1, G[0] + 1))
    a("v_mul_f32 v%d, -v13, v%d" % (G[0] + 3, G[0] + 3))
    for e in range(1, 9):
        mul2(G[e], G[e - 1], W1, True)
    a("s_waitcnt lgkmcnt(0)")
    for e in range(9): wrow(rowof[e], G[e])
    for i, e in enumerate((0, 2, 4, 6, 8)):
        G[256 + e] = 164 + 4 * i
        mul2(G[256 + e], G[e], W256, True)
    for e in (0, 2, 4, 6, 8): wrow(rowof[256 + e], G[256 + e])
    for i, e in enumerate((0, 4, 8)):
        G[512 + e] = 128 + 4 * i
        mul2(G[512 + e], G[256 + e], W256, True)
    for e in (0, 4, 8): wrow(rowof[512 + e], G[512 + e])
    for i, e in enumerate((0, 4, 8)):
        G[768 + e] = 140 + 4 * i
        mul2(G[768 + e], G[512 + e], W256, True)
    for e in (0, 4, 8): wrow(rowof[768 + e], G[768 + e])
    for bi, base in enumerate((1024, 1280, 1536, 1792)):
        for i, e in enumerate((0, 8)):
            G[base + e] = 152 + 8 * (bi & 1) + 4 * i
            mul2(G[base + e], G[base - 256 + e], W256, True)
        for e in (0, 8): wrow(rowof[base + e], G[base + e])
    a("s_waitcnt lgkmcnt(0)")
    for k in range(16):
        a("ds_read_b128 v[%d:%d], v6 offset:%d" % (128 + 4 * k, 131 + 4 * k, 32 * k))
    D = 192
    for k in range(16):
        a("s_waitcnt lgkmcnt(%d)" % (15 - k))
        a("v_mfma_f32_32x32x16_bf16 v[%d:%d], v[%d:%d], v[%d:%d], %s" %
          (D, D + 15, 128 + 4 * k, 131 + 4 * k, 64 + 4 * k, 67 + 4 * k, "0" if k == 0 else "v[%d:%d]" % (D, D + 15)))
    stamp(a, cfg, 1)
    a("s_barrier")
    a("v_mov_b32 v8, 0"); a("v_mov_b32 v9, 0")
    a("s_mov_b32 exec_hi, 0x00ffffff")
    a("ds_write_b64 v5, v[8:9] offset:%d" % U0B)
    a("ds_write_b64 v5, v[8:9] offset:%d" % U2B)
    a("s_mov_b32 exec_lo, 0xff"); a("s_mov_b32 exec_hi, 0")
    a("ds_write_b64 v5, v[8:9] offset:%d" % (K0B + 4096))
    a("ds_write_b64 v5, v[8:9] offset:%d" % (K1B + 4096))
    a("s_mov_b64 exec, 1")
    a("ds_write_b32 v5, v8 offset:%d" % (U0B + 448))
    a("v_cvt_pk_bf16_f32 v10, v%d, v8" % D)
    a("ds_write_b32 v5, v10 offset:%d" % (K0B + 4092))
    a("s_mov_b64 exec, -1")
    a("v_lshlrev_b32 v11, 4, v3")
    a("v_sub_u32 v11, %d, v11" % (4080 - 512 * 7))
    a("v_add_u32 v11, s%d, v11" % SRG)
    a("v_and_b32 v13, 1, v2")
    a("v_cmp_eq_u32 s[76:77], 1, v13")
    def octet(K, xi, addr=11):
        off = 512 * (7 - xi)
        p1 = [(K[7], K[6]), (K[5], K[4]), (K[3], K[2]), (K[1], K[0])]
        p0 = [(K[8], K[7]), (K[6], K[5]), (K[4], K[3]), (K[2], K[1])]
        for i, (lo, hi) in enumerate(p1):
            a("v_cvt_pk_bf16_f32 v%d, v%d, v%d" % (16 + i, lo, hi))
        a("ds_write_b128 v%d, v[16:19] offset:%d" % (addr, K1B + off))
        for i, (lo, hi) in enumerate(p0):
            a("v_cvt_pk_bf16_f32 v%d, v%d, v%d" % (20 + i, lo, hi))
        for i in range(4):
            a("ds_write_b32 v%d, v%d offset:%d" % (addr, 20 + i, K0B - 4 + off + 4 * i))
    def reg3(q0, q1, xi, addr=11):
        a("v_cndmask_b32 v24, v%d, v%d, s[76:77]" % (q0, q1))
        octet([q0, q0, q0, q0, 24, q1, q1, q1, q1], xi, addr)
    a("v_lshlrev_b32 v12, 9, v4")
    a("v_sub_u32 v12, v11, v12")
    reg3(D + 14, D + 15, 4, 12)
    a("s_mov_b32 exec_hi, 0")
    octet([D + e for e in range(9)], 0)
    p = [D + 9 + i for i in range(5)]
    octet([p[0], p[0], p[1], p[2], p[2], p[2], p[3], p[4], p[4]], 1)
    a("s_mov_b32 exec_lo, 0"); a("s_mov_b32 exec_hi, -1")
    for xi, b in ((2, D), (3, D + 3)):
        octet([b, b, b, b + 1, b + 1, b + 1, b + 2, b + 2, b + 2], xi)
    reg3(D + 6, D + 7, 6)
    reg3(D + 8, D + 9, 7)
    a("s_mov_b64 exec, -1")
    a("s_waitcnt vmcnt(0)")
    stamp(a, cfg, 2)
    a("s_mov_b32 s76, 0x05040100")
    a("s_mov_b32 s77, 0x07060302")
    a("v_lshlrev_b32 v8, 3, v0")
    a("v_add_u32 v9, 0x10000, v8")
    a("v_add_u32 v10, 0x20000, v8")
    U = 224
    for ch in range(8):
        q, hl = ch >> 1, ch & 1
        t = 16 + 2 * (ch & 1)
        a("v_perm_b32 v%d, v%d, v%d, s%d" % (t, U + 4 + q, U + q, 76 + hl))
        a("v_perm_b32 v%d, v%d, v%d, s%d" % (t + 1, U + 12 + q, U + 8 + q, 76 + hl))
        o2 = ch * RG + U2B + 448
        o0 = ch * RG + U0B + 452
        a("ds_write_b64 v%d, v[%d:%d] offset:%d" % (8 + (o2 >> 16), t, t + 1, o2 & 0xffff))
        a("ds_write_b32 v%d, v%d offset:%d" % (8 + (o0 >> 16), t, o0 & 0xffff))
        a("ds_write_b32 v%d, v%d offset:%d" % (8 + ((o0 + 4) >> 16), t + 1, (o0 + 4) & 0xffff))
    a("v_bfe_u32 v3, v2, 1, 3")
    a("v_and_b32 v4, 1, v2")
    a("v_lshrrev_b32 v5, 4, v2")
    a("v_mul_u32_u24 v12, %d, v4" % (K1B - K0B))
    a("v_lshl_add_u32 v12, v5, 4, v12")
    a("v_lshlrev_b32 v6, 3, v3")
    a("v_sub_u32 v12, v12, v6")
    a("v_add_u32 v12, %d, v12" % (K0B + 4088 - 512 * 7))
    a("v_add_u32 v12, s%d, v12" % SRG)
    a("v_and_b32 v3, 7, v2")
    a("v_bfe_u32 v4, v2, 3, 1")
    a("v_mul_u32_u24 v13, %d, v4" % (U2B - U0B))
    a("v_lshl_add_u32 v13, v5, 4, v13")
    a("v_lshl_add_u32 v13, v3, 6, v13")
    a("v_add_u32 v13, %d, v13" % (U0B + 448))
    a("v_add_u32 v13, s%d, v13" % SRG)
    a("v_lshrrev_b32 v6, 1, v3")
    a("v_lshl_add_u32 v14, v3, 1, v6")
    a("v_lshlrev_b32 v14, 3, v14")
    a("v_lshl_add_u32 v14, v5, 2, v14")
    a("v_add_u32 v14, v14, v4")
    a("v_lshlrev_b32 v14, 2, v14")
    a("v_add_u32 v14, s%d, v14" % SRG)
    a("s_waitcnt lgkmcnt(0)")
    for q in range(4):
        a("s_lshl_b32 s76, s%d, 16" % (88 + q))
        a("s_and_b32 s77, s%d, 0xffff0000" % (88 + q))
        for i in range(4):
            r = U + 4 * i + q
            a("v_lshlrev_b32 v16, 16, v%d" % r)
            a("v_and_b32 v17, v7, v%d" % r)
            a("v_mul_f32 v16, s76, v16")
            a("v_mul_f32 v17, s77, v17")
            a("v_cvt_pk_bf16_f32 v%d, v16, v17" % r)
    ACC = 192
    for i in range(32):
        a("v_mov_b32 v%d, 0" % (ACC + i))
    a("s_barrier")
    stamp(a, cfg, 3)
    def cload(buf):
        A0, B0 = 64 + 32 * buf, 128 + 32 * buf
        for i in range(8):
            a("ds_read_b64 v[%d:%d], v12 offset:%d" % (A0 + 4 * i, A0 + 4 * i + 1, 512 * (7 - i)))
            a("ds_read_b64 v[%d:%d], v12 offset:%d" % (A0 + 4 * i + 2, A0 + 4 * i + 3, 512 * (7 - i) + 8))
            a("ds_read_b128 v[%d:%d], v13 offset:%d" % (B0 + 4 * i, B0 + 4 * i + 3, 512 * i))
        a("v_subrev_u32 v12, 64, v12")
        a("v_subrev_u32 v13, 64, v13")
    def cmma(buf):
        A0, B0 = 64 + 32 * buf, 128 + 32 * buf
        for mu in range(8):
            for tau in range(mu, 8):
                d = ACC + 4 * tau
                dl = tau - mu
                a("v_mfma_f32_16x16x32_bf16 v[%d:%d], v[%d:%d], v[%d:%d], v[%d:%d]" %
                  (d, d + 3, A0 + 4 * mu, A0 + 4 * mu + 3, B0 + 4 * dl, B0 + 4 * dl + 3, d, d + 3))
    cload(0)
    a("s_mov_b32 s76, 0")
    a.label("L_B_conv")
    a("s_waitcnt lgkmcnt(0)")
    cload(1)
    cmma(0)
    a("s_waitcnt lgkmcnt(0)")
    a("s_cmp_eq_u32 s76, 3")
    a("s_cbranch_scc1 L_B_skip")
    cload(0)
    a.label("L_B_skip")
    cmma(1)
    a("s_add_u32 s76, s76, 1")
    a("s_cmp_lt_u32 s76, 4")
    a("s_cbranch_scc1 L_B_conv")
    stamp(a, cfg, 4)
    for tau in range(8):
        d = ACC + 4 * tau
        a("v_cvt_pk_bf16_f32 v16, v%d, v%d" % (d, d + 1))
        a("v_cvt_pk_bf16_f32 v17, v%d, v%d" % (d + 2, d + 3))
        a("ds_write_b32 v14, v16 offset:%d" % (640 * tau))
        a("ds_write_b32 v14, v17 offset:%d" % (640 * tau + 8))
    a("v_lshrrev_b32 v8, 4, v0")
    a("v_lshlrev_b32 v8, 5, v8")
    a("v_lshl_add_u32 v8, v0, 3, v8")
    a("v_add_u32 v9, 0x10000, v8")
    a("v_add_u32 v10, 0x20000, v8")
    a("v_mul_u32_u24 v11, %d, v0" % (4 * 4608))
    a("s_lshl_b32 s76, s%d, 5" % GB)
    a("s_add_u32 s76, s76, 2304")
    a("v_add_u32 v11, s76, v11")
    a("s_waitcnt lgkmcnt(0)")
    a("s_barrier")
    for ch in range(8):
        o = ch * RG
        a("ds_read_b64 v[%d:%d], v%d offset:%d" % (64 + 2 * ch, 65 + 2 * ch, 8 + (o >> 16), o & 0xffff))
    a("s_waitcnt lgkmcnt(0)")
    for i in range(4):
        R = 128 + 8 * i
        for q in range(4):
            sk = U + 4 * i + q
            for hl in range(2):
                ch = 2 * q + hl
                y = 64 + 2 * ch + (i >> 1)
                if i & 1: a("v_and_b32 v%d, v7, v%d" % (16 + hl, y))
                else: a("v_lshlrev_b32 v%d, 16, v%d" % (16 + hl, y))
                if hl: a("v_and_b32 v%d, v7, v%d" % (18 + hl, sk))
                else: a("v_lshlrev_b32 v%d, 16, v%d" % (18 + hl, sk))
                a("v_add_f32 v%d, v%d, v%d" % (16 + hl, 16 + hl, 18 + hl))
            a("v_cvt_pk_bf16_f32 v16, v16, v17")
            a("v_lshlrev_b32 v%d, 16, v16" % (R + 2 * q))
            a("v_and_b32 v%d, v7, v16" % (R + 2 * q + 1))
        a("s_mov_b32 s77, %d" % (4608 * i))
        a("buffer_store_dwordx4 v[%d:%d], v11, s[72:75], s77 offen" % (R, R + 3))
        a("buffer_store_dwordx4 v[%d:%d], v11, s[72:75], s77 offen offset:16" % (R + 4, R + 7))
    if cfg.stamps:
        a("s_waitcnt vmcnt(0)")
    stamp(a, cfg, 5)
    dump_stamps(a, cfg, 6)
    a("s_endpgm")

def gen(cfg):
    a = Asm()
    a("s_load_dwordx16 s[4:19], s[0:1], 0")
    a("s_load_dwordx16 s[20:35], s[0:1], 64")
    a("s_load_dwordx4 s[36:39], s[0:1], 128")
    a("s_load_dwordx2 s[40:41], s[0:1], 144")
    a("s_cmp_ge_u32 s2, 216")
    a("s_cbranch_scc1 L_end")
    a("s_and_b32 s%d, s2, 7" % S_XCD)
    a("s_lshr_b32 s%d, s2, 3" % S_IDX)
    a("v_lshrrev_b32 v1, 6, v0")
    a("v_and_b32 v2, 63, v0")
    a("v_readfirstlane_b32 s%d, v1" % S_WAVE)
    a("s_cmp_ge_u32 s%d, 9" % S_IDX)
    a("s_cselect_b32 s3, 1, 0")
    a("s_lshl_b32 s%d, s%d, 1" % (S_C, S_XCD))
    a("s_add_u32 s%d, s%d, s3" % (S_C, S_C))
    a("s_mul_i32 s3, s3, 9")
    a("s_sub_u32 s%d, s%d, s3" % (S_S, S_IDX))
    a("s_waitcnt lgkmcnt(0)")
    a("s_cmp_ge_u32 s%d, 18" % S_IDX)
    a("s_cbranch_scc1 L_B")
    if cfg.doA:
        a("s_cmp_lt_u32 s%d, 4" % S_WAVE)
        a("s_cbranch_scc1 L_A_compute")
        gen_A_loader(a, cfg)
        a.label("L_A_compute")
        gen_A_compute(a, cfg)
    else:
        a("s_endpgm")
    a.label("L_B")
    if cfg.doB:
        gen_B(a, cfg)
    a.label("L_end")
    body = a.text()
    s = "\n".join(HEADER_COMMENTS) + "\n"
    s += "; @launch grid=(216,1,1) block=(512,1,1) lds=163840\n"
    s += '.amdgcn_target "amdgcn-amd-amdhsa--gfx950"\n.text\n.globl %s_kernel\n.p2align 8\n.type %s_kernel,@function\n%s_kernel:\n' % (NAME, NAME, NAME)
    s += body
    s += "    s_endpgm\n"
    s += """.section .rodata,"a"
.p2align 6
.amdhsa_kernel %s_kernel
  .amdhsa_next_free_vgpr 256
  .amdhsa_next_free_sgpr 102
  .amdhsa_accum_offset 256
  .amdhsa_group_segment_fixed_size 0
  .amdhsa_kernarg_size 152
  .amdhsa_user_sgpr_count 2
  .amdhsa_user_sgpr_kernarg_segment_ptr 1
  .amdhsa_system_sgpr_workgroup_id_x 1
  .amdhsa_float_denorm_mode_32 3
.end_amdhsa_kernel
""" % NAME
    return s

if __name__ == "__main__":
    cfg = Cfg()
    out = "cdna_kernels/%s.s" % NAME
    for arg in sys.argv[1:]:
        if arg.startswith("-o"):
            out = arg[2:]
        else:
            k, v = arg.split("=")
            setattr(cfg, k, int(v))
    open(out, "w").write(gen(cfg))
    print("wrote", out)
```
